```python
import torch

def _softmax(x, axis=-1):
    return torch.softmax(x, dim=axis)
def _gelu(x):
    return torch.nn.functional.gelu(x, approximate="tanh")
def _silu(x):
    return torch.nn.functional.silu(x)
def _sigmoid(x):
    return torch.sigmoid(x)
def _layernorm(x, axis=-1, eps=1e-5):
    m = x.mean(dim=axis, keepdim=True)
    v = x.var(dim=axis, keepdim=True, unbiased=False)
    return (x - m) / torch.sqrt(v + eps)
def _scatter_add(tgt, idx, src, axis=0):
    return tgt.clone().index_add_(axis, idx, src)
def _segment_sum(src, seg, n):
    out = torch.zeros((n,) + src.shape[1:], dtype=src.dtype)
    return out.index_add_(0, seg, src)
def _pad(x, pw):
    flat = tuple(v for pair in reversed(pw) for v in pair)
    return torch.nn.functional.pad(x, flat)

kernel_name = 'standalone__gqa_block_cached__near_ridge'

def setup_inputs():

    _w = (lambda a: (lambda t: t.to(torch.bfloat16) if t.is_floating_point() else t)(torch.as_tensor(a)))
    B, Sq, D = 8, 64, 448
    Hq, Hkv, Sk, Dh = 16, 8, 1024, 256
    assert Hq % Hkv == 0, (Hq, Hkv)
    return {
        "x": _w((lambda *s: torch.randn(*s, dtype=torch.bfloat16) * 0.8)(B, Sq, D)),
        "k_cache": _w((lambda *s: torch.randn(*s, dtype=torch.bfloat16) * 0.8)(B, Hkv, Sk, Dh)),
        "v_cache": _w((lambda *s: torch.randn(*s, dtype=torch.bfloat16) * 0.05)(B, Hkv, Sk, Dh)),
        "wq": _w((lambda *s: torch.randn(*s, dtype=torch.bfloat16) * 0.8)(D, Hq * Dh) * (D ** -0.5)),
        "wo": _w((lambda *s: torch.randn(*s, dtype=torch.bfloat16) * 0.05)(Hq * Dh, D) * ((Hq * Dh) ** -0.5)),
    }

def reference(x, k_cache, v_cache, wq, wo):
    B, Sq, D = x.shape
    Hq, Dh = 16, 256
    Hkv = k_cache.shape[1]
    rep = Hq // Hkv
    q = (lambda x, *d: x.permute(*d))((x @ wq).reshape(B, Sq, Hq, Dh), 0, 2, 1, 3)
    k = (lambda x, n, axis: torch.repeat_interleave(x, n, dim=axis))(k_cache, rep, axis=1)
    v = (lambda x, n, axis: torch.repeat_interleave(x, n, dim=axis))(v_cache, rep, axis=1)
    scores = torch.einsum("bhqd,bhkd->bhqk", q, k) * (Dh ** -0.5)
    p = _softmax(scores, axis=-1)
    o = torch.einsum("bhqk,bhkd->bhqd", p, v)
    return (lambda x, *d: x.permute(*d))(o, 0, 2, 1, 3).reshape(B, Sq, Hq * Dh) @ wo
```

```python
class Asm:
    def __init__(self):
        self.lines = []
        self._lab = 0

    def __call__(self, s):
        for ln in s.strip("\n").split("\n"):
            self.lines.append("    " + ln.strip())

    def label(self, name):
        self.lines.append(name + ":")

    def raw(self, s):
        self.lines.append(s)

    def newlabel(self, base):
        self._lab += 1
        return f"{base}_{self._lab}"

    def text(self):
        return "\n".join(self.lines) + "\n"


def vr(n, cnt=1, kind="v"):
    return f"{kind}{n}" if cnt == 1 else f"{kind}[{n}:{n+cnt-1}]"


def R(n, cnt=1):
    if n >= 256:
        return vr(n - 256, cnt, "a")
    assert n + cnt <= 256
    return vr(n, cnt, "v")


def srd(a, d, base, nbytes):
    a(f"s_mov_b32 s{d}, s{base}")
    a(f"s_and_b32 s{d+1}, s{base+1}, 0xffff")
    a(f"s_mov_b32 s{d+2}, {nbytes}")
    a(f"s_mov_b32 s{d+3}, 0x00020000")


def kernel_begin(a, name):
    a.raw(f".globl {name}")
    a.raw(".p2align 8")
    a.raw(f".type {name},@function")
    a.label(name)


def kernel_desc(name, vgpr, accum, sgpr=102):
    return f""".p2align 6
.amdhsa_kernel {name}
  .amdhsa_next_free_vgpr {vgpr}
  .amdhsa_next_free_sgpr {sgpr}
  .amdhsa_accum_offset {accum}
  .amdhsa_group_segment_fixed_size 0
  .amdhsa_kernarg_size 64
  .amdhsa_user_sgpr_count 2
  .amdhsa_user_sgpr_kernarg_segment_ptr 1
  .amdhsa_system_sgpr_workgroup_id_x 1
  .amdhsa_float_denorm_mode_32 3
.end_amdhsa_kernel
"""

HEADER = """; Kernarg layout for this problem (64 bytes, ptrs only, base s[0:1]):
"""
```

```python
import sys
from asmlib import *

NT = sys.argv[2] if len(sys.argv) > 2 else "nt"
NT = "" if NT == "plain" else NT
PROBE = sys.argv[3] if len(sys.argv) > 3 else ""

X_B, KV_B, W_B, OUT_B, WS_B = 458752, 33554432, 3670016, 458752, 268435456
WS_Q, WS_OP, WS_ST, WS_PO = 0, 4 << 20, 20 << 20, 24 << 20
LOG2E_16 = 0x3DB8AA3B

a = Asm()

def prologue(nwg):
    a(f"s_cmp_ge_u32 s2, {nwg}")
    a("s_cbranch_scc0 1f\ns_endpgm")
    a.raw("1:")
    a("s_load_dwordx8 s[4:11], s[0:1], 0\ns_load_dwordx8 s[12:19], s[0:1], 32")
    a("s_and_b32 s20, s2, 7\ns_lshr_b32 s21, s2, 3\ns_and_b32 s22, s21, 3\ns_lshr_b32 s21, s21, 2")
    a("v_lshrrev_b32 v1, 6, v0\ns_nop 0\nv_readfirstlane_b32 s23, v1\nv_and_b32 v0, 63, v0")
    a("s_waitcnt lgkmcnt(0)")

kernel_begin(a, "qproj_kernel")
prologue(256)
srd(a, 24, 4, X_B); srd(a, 28, 10, W_B); srd(a, 32, 18, WS_B)
a("v_lshrrev_b32 v5, 3, v0\nv_and_b32 v6, 7, v0\nv_lshrrev_b32 v7, 4, v0")
a("s_lshl_b32 s36, s23, 4\ns_mul_i32 s37, s21, 64\ns_add_u32 s36, s36, s37")
for i in range(2):
    a(f"v_add_u32 v8, {8*i}, v5\nv_add_u32 v8, s36, v8\nv_mul_u32_u24 v8, 896, v8")
    a(f"v_add_u32 v9, {4*i}, v7\nv_xor_b32 v9, v6, v9\nv_lshl_add_u32 v{2+i}, v9, 4, v8")
a("v_and_b32 v8, 15, v0\nv_lshlrev_b32 v9, 2, v7\nv_xor_b32 v8, v8, v9\nv_lshlrev_b32 v8, 4, v8\nv_lshl_add_u32 v4, v7, 13, v8")
a("s_lshl_b32 s38, s20, 10\ns_lshl_b32 s39, s22, 8\ns_add_u32 s38, s38, s39")
a("s_lshl_b32 s39, s23, 17\ns_add_u32 s38, s38, s39")
CH = 24576
def q_load(c, slot):
    for i in range(2):
        a(f"s_lshl_b32 s40, s23, 11\ns_add_u32 m0, s40, {slot*CH + i*1024}\ns_mov_b32 s41, {c*128}")
        a(f"buffer_load_dwordx4 v{2+i}, s[24:27], s41 offen {NT} lds")
    for i in range(4):
        a(f"s_lshl_b32 s40, s23, 12\ns_add_u32 m0, s40, {slot*CH + 8192 + i*1024}\ns_add_u32 s41, s38, {(c*64 + i*4)*8192}")
        a(f"buffer_load_dwordx4 v4, s[28:31], s41 offen {NT} lds")
for c in range(6):
    q_load(c, c)
a("v_and_b32 v5, 15, v0\nv_lshrrev_b32 v6, 2, v5\nv_lshrrev_b32 v7, 5, v0")
a("v_lshl_add_u32 v8, v7, 3, v6\nv_lshlrev_b32 v8, 8, v8")
a("v_xor_b32 v9, s23, v6\nv_lshl_add_u32 v8, v9, 6, v8")
a("v_bfe_u32 v9, v0, 4, 1\nv_lshl_add_u32 v8, v9, 5, v8")
a("v_and_b32 v9, 1, v0\nv_lshl_add_u32 v8, v9, 4, v8\nv_bfe_u32 v9, v0, 1, 1\nv_lshl_add_u32 v8, v9, 3, v8")
a("v_add_u32 v10, 8192, v8")
a("v_and_b32 v5, 31, v0\nv_bfe_u32 v6, v0, 1, 3")
for kk in range(4):
    a(f"v_add_u32 v8, {2*kk}, v7\nv_xor_b32 v8, v8, v6\nv_lshlrev_b32 v8, 4, v8\nv_lshl_add_u32 v{11+kk}, v5, 7, v8")
for r in range(32):
    a(f"v_mov_b32 v{32+r}, 0")
def q_comp(slot):
    base = slot*CH
    a(f"v_add_u32 v15, {base}, v10")
    for kk in range(4):
        a(f"v_add_u32 v16, {base}, v{11+kk}")
        a(f"ds_read_b64_tr_b16 v[64:65], v15 offset:{(16*kk)*256}\nds_read_b64_tr_b16 v[66:67], v15 offset:{(16*kk+4)*256}")
        a("ds_read_b128 v[68:71], v16\nds_read_b128 v[72:75], v16 offset:4096")
        a("s_waitcnt lgkmcnt(0)")
        a("v_mfma_f32_32x32x16_bf16 v[32:47], v[64:67], v[68:71], v[32:47]")
        a("v_mfma_f32_32x32x16_bf16 v[48:63], v[64:67], v[72:75], v[48:63]")
a("s_waitcnt vmcnt(0)\ns_barrier")
q_comp(0)
a("s_barrier")
q_load(6, 0)
for c in range(1, 6):
    q_comp(c)
a("s_waitcnt vmcnt(0)\ns_barrier")
q_comp(0)
a("s_nop 15\ns_nop 3")
for r in range(0, 32, 2):
    a(f"v_cvt_pk_bf16_f32 v{64+r//2}, v{32+r}, v{33+r}")
a("s_lshl_b32 s40, s21, 3\ns_add_u32 s40, s40, s20\ns_lshl_b32 s40, s40, 16")
a("s_lshr_b32 s41, s22, 1\ns_lshl_b32 s41, s41, 15\ns_add_u32 s40, s40, s41")
a("s_and_b32 s41, s22, 1\ns_lshl_b32 s41, s41, 13\ns_add_u32 s40, s40, s41")
a("s_lshl_b32 s41, s23, 11\ns_add_u32 s40, s40, s41\ns_add_u32 s41, s40, 16384")
a("v_lshlrev_b32 v2, 4, v0")
a("buffer_store_dwordx4 v[64:67], v2, s[32:35], s40 offen\nbuffer_store_dwordx4 v[68:71], v2, s[32:35], s40 offen offset:1024")
a("buffer_store_dwordx4 v[72:75], v2, s[32:35], s41 offen\nbuffer_store_dwordx4 v[76:79], v2, s[32:35], s41 offen offset:1024")
a("s_endpgm")

kernel_begin(a, "attn_kernel")
prologue(256)
srd(a, 24, 6, KV_B); srd(a, 28, 8, KV_B); srd(a, 32, 18, WS_B)
a("s_lshl_b32 s36, s21, 3\ns_add_u32 s36, s36, s20")
a("s_lshl_b32 s37, s36, 19\ns_lshl_b32 s38, s22, 17\ns_add_u32 s37, s37, s38")
a("s_lshl_b32 s38, s36, 16\ns_lshl_b32 s39, s23, 14\ns_add_u32 s38, s38, s39\nv_lshlrev_b32 v2, 4, v0")
for ks in range(16):
    a(f"s_add_u32 s39, s38, {(ks//4)*4096}\nbuffer_load_dwordx4 a[{4*ks}:{4*ks+3}], v2, s[32:35], s39 offen offset:{(ks%4)*1024}")
a("v_lshrrev_b32 v5, 5, v0\nv_and_b32 v6, 31, v0\ns_lshl_b32 s38, s23, 2")
for i in range(2):
    a(f"v_add_u32 v7, {2*i}, v5\nv_add_u32 v7, s38, v7\nv_xor_b32 v8, v6, v7\nv_lshlrev_b32 v8, 4, v8\nv_lshl_add_u32 v{3+i}, v7, 9, v8")
for g16 in range(16):
    for i in range(2):
        a(f"s_lshl_b32 s40, s23, 11\ns_add_u32 m0, s40, {g16*8192 + i*1024}\ns_add_u32 s41, s37, {g16*8192}")
        a(f"buffer_load_dwordx4 v{3+i}, s[24:27], s41 offen {NT} lds")
a("v_and_b32 v7, 15, v0")
for k8 in range(8):
    a(f"v_add_u32 v8, {2*k8}, v5\nv_xor_b32 v8, v8, v7\nv_lshlrev_b32 v8, 4, v8\nv_lshl_add_u32 v{10+k8}, v6, 9, v8")
a("v_lshrrev_b32 v7, 3, v0\nv_and_b32 v8, 7, v0\nv_bfe_u32 v20, v0, 4, 1\nv_lshlrev_b32 v21, 2, v20\nv_xor_b32 v8, v8, v21\nv_lshlrev_b32 v8, 4, v8\nv_lshl_add_u32 v9, v7, 9, v8")
a("v_bfe_u32 v7, v0, 2, 2\nv_lshl_add_u32 v7, v5, 2, v7\nv_lshlrev_b32 v7, 7, v7\nv_lshl_add_u32 v7, v20, 5, v7\nv_and_b32 v8, 3, v0\nv_lshl_add_u32 v7, v8, 3, v7")
a("v_bfe_u32 v8, v0, 3, 1\nv_lshl_add_u32 v18, v8, 6, v7\nv_xor_b32 v8, 1, v8\nv_lshl_add_u32 v19, v8, 6, v7")
a("s_waitcnt vmcnt(0)\ns_barrier")
S0 = 128
for kt in range(8):
    if kt == 4:
        for k8 in range(8):
            a(f"v_add_u32 v{10+k8}, 0x10000, v{10+k8}")
    for ks in range(16):
        a(f"ds_read_b128 v[{32+4*ks}:{35+4*ks}], v{10+ks%8} offset:{(kt%4)*16384 + (ks//8)*256}")
    for ks in range(16):
        a(f"s_waitcnt lgkmcnt({15-ks})")
        c = "0" if ks == 0 else f"v[{S0+16*kt}:{S0+16*kt+15}]"
        a(f"v_mfma_f32_32x32x16_bf16 v[{S0+16*kt}:{S0+16*kt+15}], v[{32+4*ks}:{35+4*ks}], a[{4*ks}:{4*ks+3}], {c}")
a("s_barrier")
for j in range(4):
    for i in range(8):
        a(f"s_lshl_b32 s40, s23, 13\ns_add_u32 m0, s40, {j*32768 + i*1024}\ns_lshl_b32 s41, s23, 15\ns_add_u32 s41, s41, s37\ns_add_u32 s41, s41, {i*4096 + j*128}")
        a(f"buffer_load_dwordx4 v9, s[28:31], s41 offen {NT} lds")
a("s_nop 15")
a(f"v_max_f32 v20, v{S0}, v{S0+1}")
for r in range(2, 128, 2):
    a(f"v_max3_f32 v20, v20, v{S0+r}, v{S0+r+1}")
a("v_mov_b32 v21, v20\ns_nop 1\nv_permlane32_swap_b32 v20, v21\ns_nop 1\nv_max_f32 v20, v20, v21")
a(f"s_mov_b32 s42, {LOG2E_16}\nv_mul_f32 v20, s42, v20\nv_mov_b32 v22, 0")
for r in range(128):
    a(f"v_fma_f32 v{S0+r}, v{S0+r}, s42, -v20")
for r in range(128):
    a(f"v_exp_f32 v{S0+r}, v{S0+r}")
a("s_nop 0")
for r in range(128):
    a(f"v_add_f32 v22, v22, v{S0+r}")
for r in range(0, 128, 2):
    a(f"v_cvt_pk_bf16_f32 v{32+r//2}, v{S0+r}, v{S0+r+1}")
a("v_mov_b32 v23, v22\ns_nop 1\nv_permlane32_swap_b32 v22, v23\ns_nop 1\nv_add_f32 v21, v22, v23\nv_rcp_f32 v22, v21")
a(f"s_lshl_b32 s40, s36, 4\ns_lshl_b32 s41, s22, 2\ns_add_u32 s40, s40, s41\ns_add_u32 s43, s40, s23\ns_lshl_b32 s40, s43, 9\ns_add_u32 s40, s40, {WS_ST}")
a("v_lshlrev_b32 v24, 3, v0\nbuffer_store_dwordx2 v[20:21], v24, s[32:35], s40 offen")
a(f"s_lshl_b32 s43, s43, 14\ns_add_u32 s43, s43, {WS_OP}")
a("s_waitcnt vmcnt(0)\ns_barrier")
for j in range(4):
    if j == 2:
        a("v_add_u32 v18, 0x10000, v18\nv_add_u32 v19, 0x10000, v19")
    for td in range(2):
        for n in range(16):
            off = (j % 2)*32768 + n*16*128
            a(f"ds_read_b64_tr_b16 v[{128+4*n}:{129+4*n}], v{18+td} offset:{off}\nds_read_b64_tr_b16 v[{130+4*n}:{131+4*n}], v{18+td} offset:{off+1024}")
        a("s_waitcnt lgkmcnt(0)")
        for n in range(16):
            c = "0" if n == 0 else f"v[{96+16*td}:{111+16*td}]"
            a(f"v_mfma_f32_32x32x16_bf16 v[{96+16*td}:{111+16*td}], v[{128+4*n}:{131+4*n}], v[{32+4*n}:{35+4*n}], {c}")
    a("s_nop 15\ns_nop 3")
    for r in range(32):
        a(f"v_mul_f32 v{96+r}, v{96+r}, v22")
    for r in range(0, 32, 2):
        a(f"v_cvt_pk_bf16_f32 v{200+r//2}, v{96+r}, v{97+r}")
    a(f"s_add_u32 s40, s43, {j*4096}")
    for f in range(4):
        a(f"buffer_store_dwordx4 v[{200+4*f}:{203+4*f}], v2, s[32:35], s40 offen offset:{f*1024}")
    a("s_nop 2")
a("s_endpgm")

kernel_begin(a, "oproj_kernel")
prologue(256)
srd(a, 24, 12, W_B); srd(a, 32, 18, WS_B)
a("s_lshl_b32 s36, s21, 3\ns_add_u32 s36, s36, s20")
for i in range(7):
    a(f"v_add_u32 v10, {64*i}, v0\nv_mul_u32_u24 v11, 1171, v10\nv_lshrrev_b32 v11, 16, v11\nv_bfe_u32 v11, v11, 1, 1\nv_lshlrev_b32 v11, 2, v11\nv_xor_b32 v10, v10, v11\nv_lshlrev_b32 v{2+i}, 4, v10")
a("s_lshl_b32 s37, s20, 1\ns_lshr_b32 s38, s22, 1\ns_add_u32 s37, s37, s38\ns_mul_i32 s37, s37, 229376")
a("s_mul_i32 s38, s23, 14336\ns_add_u32 s37, s37, s38")
def wo_load(j):
    for u in range(2):
        for i in range(7):
            a(f"s_add_u32 m0, s38, {(j%2)*57344 + u*7168 + i*1024}\ns_add_u32 s41, s37, {j*57344 + u*7168}")
            a(f"buffer_load_dwordx4 v{2+i}, s[24:27], s41 offen {NT} lds")
wo_load(0); wo_load(1)
a("v_lshlrev_b32 v10, 3, v0\nv_lshlrev_b32 v11, 4, v0")
a(f"s_lshl_b32 s40, s36, 4\ns_add_u32 s43, s40, s22\ns_lshl_b32 s40, s43, 9\ns_add_u32 s40, s40, {WS_ST}")
for s in range(4):
    a(f"s_add_u32 s41, s40, {s*2048}\nbuffer_load_dwordx2 v[{12+2*s}:{13+2*s}], v10, s[32:35], s41 offen")
a("s_waitcnt vmcnt(0)")
a("v_max_f32 v20, v12, v14\nv_max3_f32 v20, v20, v16, v18")
for s in range(4):
    a(f"v_sub_f32 v{12+2*s}, v{12+2*s}, v20\nv_exp_f32 v{12+2*s}, v{12+2*s}\ns_nop 0\nv_mul_f32 v{12+2*s}, v{12+2*s}, v{13+2*s}")
a("v_add_f32 v20, v12, v14\nv_add_f32 v20, v20, v16\nv_add_f32 v20, v20, v18\nv_rcp_f32 v20, v20\ns_nop 0")
for s in range(4):
    a(f"v_mul_f32 v{12+2*s}, v{12+2*s}, v20")
a(f"s_lshl_b32 s43, s43, 14\ns_add_u32 s43, s43, {WS_OP}")
for j in range(4):
    for s in range(4):
        a(f"s_add_u32 s41, s43, {s*65536 + j*4096}")
        for f in range(4):
            a(f"buffer_load_dwordx4 v[{128+16*s+4*f}:{131+16*s+4*f}], v11, s[32:35], s41 offen offset:{f*1024}")
    a("s_waitcnt vmcnt(0)")
    for r in range(16):
        for s in range(4):
            src = 128 + 16*s + r
            a(f"v_lshlrev_b32 v24, 16, v{src}\nv_and_b32 v25, 0xffff0000, v{src}")
            if s == 0:
                a("v_mul_f32 v22, v24, v12\nv_mul_f32 v23, v25, v12")
            else:
                a(f"v_fmac_f32 v22, v24, v{12+2*s}\nv_fmac_f32 v23, v25, v{12+2*s}")
        a(f"v_cvt_pk_bf16_f32 v{64+16*j+r}, v22, v23")
a("v_lshrrev_b32 v5, 5, v0\nv_bfe_u32 v20, v0, 2, 2\nv_lshl_add_u32 v20, v5, 2, v20\nv_mul_u32_u24 v20, 896, v20")
a("v_bfe_u32 v21, v0, 4, 1\nv_lshl_add_u32 v20, v21, 5, v20\nv_and_b32 v21, 3, v0\nv_lshl_add_u32 v20, v21, 3, v20")
a("s_lshl_b32 s44, s23, 8\nv_add_u32 v20, s44, v20")
a("v_bfe_u32 v21, v0, 3, 1\nv_lshl_add_u32 v26, v21, 6, v20\nv_xor_b32 v21, 1, v21\nv_lshl_add_u32 v27, v21, 6, v20")
a("v_add_u32 v28, 57344, v26\nv_add_u32 v29, 57344, v27")
for r in range(64):
    a(f"v_mov_b32 v{128+r}, 0")
def wo_comp(j):
    for t in range(4):
        if t == 2:
            a("s_cmp_eq_u32 s23, 3\ns_cbranch_scc1 2f")
        for k in range(4):
            off = k*16*896 + (t//2)*128
            ad = 26 + (t % 2) + 2*(j % 2)
            a(f"ds_read_b64_tr_b16 v[{32+4*k}:{33+4*k}], v{ad} offset:{off}\nds_read_b64_tr_b16 v[{34+4*k}:{35+4*k}], v{ad} offset:{off+8*896}")
        a("s_waitcnt lgkmcnt(0)")
        for k in range(4):
            a(f"v_mfma_f32_32x32x16_bf16 v[{128+16*t}:{143+16*t}], v[{32+4*k}:{35+4*k}], v[{64+16*j+4*k}:{67+16*j+4*k}], v[{128+16*t}:{143+16*t}]")
    a.raw("2:")
a("s_barrier")
wo_comp(0); wo_comp(1)
a("s_barrier")
for i in range(7):
    a(f"v_add_u32 v10, {64*i}, v0\nv_mul_u32_u24 v9, 1171, v10\nv_lshrrev_b32 v9, 16, v9\nv_bfe_u32 v9, v9, 1, 1\nv_lshlrev_b32 v9, 2, v9\nv_xor_b32 v10, v10, v9\nv_lshlrev_b32 v{2+i}, 4, v10")
wo_load(2); wo_load(3)
a("s_waitcnt vmcnt(0)\ns_barrier")
wo_comp(2); wo_comp(3)
a("s_nop 15\ns_nop 3")
a(f"s_lshl_b32 s40, s36, 2\ns_add_u32 s40, s40, s22\ns_mul_i32 s40, s40, 57344\ns_lshl_b32 s41, s23, 14\ns_add_u32 s40, s40, s41\ns_add_u32 s40, s40, {WS_PO}")
for t in range(4):
    if t == 2:
        a("s_cmp_eq_u32 s23, 3\ns_cbranch_scc1 2f")
    a(f"s_add_u32 s41, s40, {t*4096}")
    for f in range(4):
        a(f"buffer_store_dwordx4 v[{128+16*t+4*f}:{131+16*t+4*f}], v11, s[32:35], s41 offen offset:{f*1024}")
a.raw("2:")
a("s_endpgm")

kernel_begin(a, "reduce_kernel")
prologue(224)
srd(a, 24, 14, OUT_B); srd(a, 32, 18, WS_B)
a("s_mul_i32 s36, s2, 4682\ns_lshr_b32 s36, s36, 16\ns_mul_i32 s37, s36, 14\ns_sub_u32 s37, s2, s37")
a("s_lshr_b32 s38, s36, 1\ns_and_b32 s39, s36, 1")
a(f"s_lshl_b32 s40, s38, 5\ns_add_u32 s40, s40, s39\ns_mul_i32 s40, s40, 57344\ns_lshl_b32 s41, s37, 12\ns_add_u32 s40, s40, s41\ns_lshl_b32 s41, s23, 10\ns_add_u32 s40, s40, s41\ns_add_u32 s40, s40, {WS_PO}")
a("v_lshlrev_b32 v2, 4, v0")
for h in range(16):
    a(f"s_add_u32 s41, s40, {h*2*57344}\nbuffer_load_dwordx4 v[{8+4*h}:{11+4*h}], v2, s[32:35], s41 offen")
a("v_and_b32 v3, 31, v0\nv_mul_u32_u24 v3, 896, v3\nv_lshrrev_b32 v4, 5, v0\nv_lshl_add_u32 v3, v4, 3, v3")
a("s_mul_i32 s40, s36, 28672\ns_lshl_b32 s41, s37, 6\ns_add_u32 s40, s40, s41\ns_lshl_b32 s41, s23, 4\ns_add_u32 s40, s40, s41")
a("s_waitcnt vmcnt(0)")
for h in range(1, 16):
    for r in range(4):
        a(f"v_add_f32 v{8+r}, v{8+r}, v{8+4*h+r}")
a("v_cvt_pk_bf16_f32 v4, v8, v9\nv_cvt_pk_bf16_f32 v5, v10, v11")
a("buffer_store_dwordx2 v[4:5], v3, s[24:27], s40 offen")
a("s_endpgm")

launches = [("qproj_kernel", 256, 147456), ("attn_kernel", 256, 131072), ("oproj_kernel", 256, 114688), ("reduce_kernel", 224, 0)]
descs = [("qproj_kernel", 128, 128), ("attn_kernel", 320, 256), ("oproj_kernel", 256, 256), ("reduce_kernel", 128, 128)]

out = HEADER
for k, g, l in launches:
    out += f"; @launch kernel={k} grid=({g},1,1) block=(256,1,1) lds={l}\n"
out += '.amdgcn_target "amdgcn-amd-amdhsa--gfx950"\n.text\n' + a.text() + '.section .rodata,"a"\n'
for k, v, ac in descs:
    out += kernel_desc(k, v, ac)
open(sys.argv[1], "w").write(out)
```

```python
import sys
from asmlib import *

NT = sys.argv[2] if len(sys.argv) > 2 else "nt"
NT = "" if NT == "plain" else NT
PROBE = sys.argv[3] if len(sys.argv) > 3 else ""

X_B, KV_B, W_B, OUT_B, WS_B = 458752, 33554432, 3670016, 458752, 268435456
WS_Q, WS_OP, WS_ST, WS_PO = 0, 4 << 20, 20 << 20, 24 << 20
LOG2E_16 = 0x3DB8AA3B

a = Asm()

def prologue(nwg):
    a(f"s_cmp_ge_u32 s2, {nwg}")
    a("s_cbranch_scc0 1f\ns_endpgm")
    a.raw("1:")
    a("s_load_dwordx8 s[4:11], s[0:1], 0\ns_load_dwordx8 s[12:19], s[0:1], 32")
    a("s_and_b32 s20, s2, 7\ns_lshr_b32 s21, s2, 3\ns_and_b32 s22, s21, 3\ns_lshr_b32 s21, s21, 2")
    a("v_lshrrev_b32 v1, 6, v0\ns_nop 0\nv_readfirstlane_b32 s23, v1\nv_and_b32 v0, 63, v0")
    a("s_waitcnt lgkmcnt(0)")

kernel_begin(a, "qproj_kernel")
prologue(256)
srd(a, 24, 4, X_B); srd(a, 28, 10, W_B); srd(a, 32, 18, WS_B)
a("v_lshrrev_b32 v5, 3, v0\nv_and_b32 v6, 7, v0\nv_lshrrev_b32 v7, 4, v0")
a("s_lshl_b32 s36, s23, 4\ns_mul_i32 s37, s21, 64\ns_add_u32 s36, s36, s37")
for i in range(2):
    a(f"v_add_u32 v8, {8*i}, v5\nv_add_u32 v8, s36, v8\nv_mul_u32_u24 v8, 896, v8")
    a(f"v_add_u32 v9, {4*i}, v7\nv_xor_b32 v9, v6, v9\nv_lshl_add_u32 v{2+i}, v9, 4, v8")
a("v_and_b32 v8, 15, v0\nv_lshlrev_b32 v9, 2, v7\nv_xor_b32 v8, v8, v9\nv_lshlrev_b32 v8, 4, v8\nv_lshl_add_u32 v4, v7, 13, v8")
a("s_lshl_b32 s38, s20, 10\ns_lshl_b32 s39, s22, 8\ns_add_u32 s38, s38, s39")
a("s_lshl_b32 s39, s23, 17\ns_add_u32 s38, s38, s39")
CH = 24576
def q_load(c, slot):
    for i in range(2):
        a(f"s_lshl_b32 s40, s23, 11\ns_add_u32 m0, s40, {slot*CH + i*1024}\ns_mov_b32 s41, {c*128}")
        a(f"buffer_load_dwordx4 v{2+i}, s[24:27], s41 offen {NT} lds")
    for i in range(4):
        a(f"s_lshl_b32 s40, s23, 12\ns_add_u32 m0, s40, {slot*CH + 8192 + i*1024}\ns_add_u32 s41, s38, {(c*64 + i*4)*8192}")
        a(f"buffer_load_dwordx4 v4, s[28:31], s41 offen {NT} lds")
for c in range(6):
    q_load(c, c)
a("v_and_b32 v5, 15, v0\nv_lshrrev_b32 v6, 2, v5\nv_lshrrev_b32 v7, 5, v0")
a("v_lshl_add_u32 v8, v7, 3, v6\nv_lshlrev_b32 v8, 8, v8")
a("v_xor_b32 v9, s23, v6\nv_lshl_add_u32 v8, v9, 6, v8")
a("v_bfe_u32 v9, v0, 4, 1\nv_lshl_add_u32 v8, v9, 5, v8")
a("v_and_b32 v9, 1, v0\nv_lshl_add_u32 v8, v9, 4, v8\nv_bfe_u32 v9, v0, 1, 1\nv_lshl_add_u32 v8, v9, 3, v8")
a("v_add_u32 v10, 8192, v8")
a("v_and_b32 v5, 31, v0\nv_bfe_u32 v6, v0, 1, 3")
for kk in range(4):
    a(f"v_add_u32 v8, {2*kk}, v7\nv_xor_b32 v8, v8, v6\nv_lshlrev_b32 v8, 4, v8\nv_lshl_add_u32 v{11+kk}, v5, 7, v8")
for r in range(32):
    a(f"v_mov_b32 v{32+r}, 0")
def q_comp(slot):
    base = slot*CH
    a(f"v_add_u32 v15, {base}, v10")
    for kk in range(4):
        a(f"v_add_u32 v16, {base}, v{11+kk}")
        a(f"ds_read_b64_tr_b16 v[64:65], v15 offset:{(16*kk)*256}\nds_read_b64_tr_b16 v[66:67], v15 offset:{(16*kk+4)*256}")
        a("ds_read_b128 v[68:71], v16\nds_read_b128 v[72:75], v16 offset:4096")
        a("s_waitcnt lgkmcnt(0)")
        a("v_mfma_f32_32x32x16_bf16 v[32:47], v[64:67], v[68:71], v[32:47]")
        a("v_mfma_f32_32x32x16_bf16 v[48:63], v[64:67], v[72:75], v[48:63]")
a("s_waitcnt vmcnt(0)\ns_barrier")
q_comp(0)
a("s_barrier")
q_load(6, 0)
for c in range(1, 6):
    q_comp(c)
a("s_waitcnt vmcnt(0)\ns_barrier")
q_comp(0)
a("s_nop 15\ns_nop 3")
for r in range(0, 32, 2):
    a(f"v_cvt_pk_bf16_f32 v{64+r//2}, v{32+r}, v{33+r}")
a("s_lshl_b32 s40, s21, 3\ns_add_u32 s40, s40, s20\ns_lshl_b32 s40, s40, 16")
a("s_lshr_b32 s41, s22, 1\ns_lshl_b32 s41, s41, 15\ns_add_u32 s40, s40, s41")
a("s_and_b32 s41, s22, 1\ns_lshl_b32 s41, s41, 13\ns_add_u32 s40, s40, s41")
a("s_lshl_b32 s41, s23, 11\ns_add_u32 s40, s40, s41\ns_add_u32 s41, s40, 16384")
a("v_lshlrev_b32 v2, 4, v0")
a("buffer_store_dwordx4 v[64:67], v2, s[32:35], s40 offen\nbuffer_store_dwordx4 v[68:71], v2, s[32:35], s40 offen offset:1024")
a("buffer_store_dwordx4 v[72:75], v2, s[32:35], s41 offen\nbuffer_store_dwordx4 v[76:79], v2, s[32:35], s41 offen offset:1024")
a("s_endpgm")

kernel_begin(a, "attn_kernel")
prologue(256)
srd(a, 24, 6, KV_B); srd(a, 28, 8, KV_B); srd(a, 32, 18, WS_B)
a("s_lshl_b32 s36, s21, 3\ns_add_u32 s36, s36, s20")
a("s_lshl_b32 s37, s36, 19\ns_lshl_b32 s38, s22, 17\ns_add_u32 s37, s37, s38")
a("s_lshl_b32 s38, s36, 16\ns_lshl_b32 s39, s23, 14\ns_add_u32 s38, s38, s39\nv_lshlrev_b32 v2, 4, v0")
for ks in range(16):
    a(f"s_add_u32 s39, s38, {(ks//4)*4096}\nbuffer_load_dwordx4 a[{4*ks}:{4*ks+3}], v2, s[32:35], s39 offen offset:{(ks%4)*1024}")
a("v_lshrrev_b32 v5, 5, v0\nv_and_b32 v6, 31, v0\ns_lshl_b32 s38, s23, 2")
for i in range(2):
    a(f"v_add_u32 v7, {2*i}, v5\nv_add_u32 v7, s38, v7\nv_xor_b32 v8, v6, v7\nv_lshlrev_b32 v8, 4, v8\nv_lshl_add_u32 v{3+i}, v7, 9, v8")
for g16 in range(16):
    for i in range(2):
        a(f"s_lshl_b32 s40, s23, 11\ns_add_u32 m0, s40, {g16*8192 + i*1024}\ns_add_u32 s41, s37, {g16*8192}")
        a(f"buffer_load_dwordx4 v{3+i}, s[24:27], s41 offen {NT} lds")
a("v_and_b32 v7, 15, v0")
for k8 in range(8):
    a(f"v_add_u32 v8, {2*k8}, v5\nv_xor_b32 v8, v8, v7\nv_lshlrev_b32 v8, 4, v8\nv_lshl_add_u32 v{10+k8}, v6, 9, v8")
a("v_lshrrev_b32 v7, 3, v0\nv_and_b32 v8, 7, v0\nv_bfe_u32 v20, v0, 4, 1\nv_lshlrev_b32 v21, 2, v20\nv_xor_b32 v8, v8, v21\nv_lshlrev_b32 v8, 4, v8\nv_lshl_add_u32 v9, v7, 9, v8")
a("v_bfe_u32 v7, v0, 2, 2\nv_lshl_add_u32 v7, v5, 2, v7\nv_lshlrev_b32 v7, 7, v7\nv_lshl_add_u32 v7, v20, 5, v7\nv_and_b32 v8, 3, v0\nv_lshl_add_u32 v7, v8, 3, v7")
a("v_bfe_u32 v8, v0, 3, 1\nv_lshl_add_u32 v18, v8, 6, v7\nv_xor_b32 v8, 1, v8\nv_lshl_add_u32 v19, v8, 6, v7")
a("s_waitcnt vmcnt(0)\ns_barrier")
S0 = 128
for kt in range(8):
    if kt == 4:
        for k8 in range(8):
            a(f"v_add_u32 v{10+k8}, 0x10000, v{10+k8}")
    for ks in range(16):
        a(f"ds_read_b128 v[{32+4*ks}:{35+4*ks}], v{10+ks%8} offset:{(kt%4)*16384 + (ks//8)*256}")
    for ks in range(16):
        a(f"s_waitcnt lgkmcnt({15-ks})")
        c = "0" if ks == 0 else f"v[{S0+16*kt}:{S0+16*kt+15}]"
        a(f"v_mfma_f32_32x32x16_bf16 v[{S0+16*kt}:{S0+16*kt+15}], v[{32+4*ks}:{35+4*ks}], a[{4*ks}:{4*ks+3}], {c}")
a("s_barrier")
for j in range(4):
    for i in range(8):
        a(f"s_lshl_b32 s40, s23, 13\ns_add_u32 m0, s40, {j*32768 + i*1024}\ns_lshl_b32 s41, s23, 15\ns_add_u32 s41, s41, s37\ns_add_u32 s41, s41, {i*4096 + j*128}")
        a(f"buffer_load_dwordx4 v9, s[28:31], s41 offen {NT} lds")
a("s_nop 15")
a(f"v_max_f32 v20, v{S0}, v{S0+1}")
for r in range(2, 128, 2):
    a(f"v_max3_f32 v20, v20, v{S0+r}, v{S0+r+1}")
a("v_mov_b32 v21, v20\ns_nop 1\nv_permlane32_swap_b32 v20, v21\ns_nop 1\nv_max_f32 v20, v20, v21")
a(f"s_mov_b32 s42, {LOG2E_16}\nv_mul_f32 v20, s42, v20\nv_mov_b32 v22, 0")
for r in range(128):
    a(f"v_fma_f32 v{S0+r}, v{S0+r}, s42, -v20")
for r in range(128):
    a(f"v_exp_f32 v{S0+r}, v{S0+r}")
a("s_nop 0")
for r in range(128):
    a(f"v_add_f32 v22, v22, v{S0+r}")
for r in range(0, 128, 2):
    a(f"v_cvt_pk_bf16_f32 v{32+r//2}, v{S0+r}, v{S0+r+1}")
a("v_mov_b32 v23, v22\ns_nop 1\nv_permlane32_swap_b32 v22, v23\ns_nop 1\nv_add_f32 v21, v22, v23\nv_rcp_f32 v22, v21")
a(f"s_lshl_b32 s40, s36, 4\ns_lshl_b32 s41, s22, 2\ns_add_u32 s40, s40, s41\ns_add_u32 s43, s40, s23\ns_lshl_b32 s40, s43, 9\ns_add_u32 s40, s40, {WS_ST}")
a("v_lshlrev_b32 v24, 3, v0\nbuffer_store_dwordx2 v[20:21], v24, s[32:35], s40 offen")
a(f"s_lshl_b32 s43, s43, 14\ns_add_u32 s43, s43, {WS_OP}")
a("s_waitcnt vmcnt(0)\ns_barrier")
for j in range(4):
    if j == 2:
        a("v_add_u32 v18, 0x10000, v18\nv_add_u32 v19, 0x10000, v19")
    for td in range(2):
        for n in range(16):
            off = (j % 2)*32768 + n*16*128
            a(f"ds_read_b64_tr_b16 v[{128+4*n}:{129+4*n}], v{18+td} offset:{off}\nds_read_b64_tr_b16 v[{130+4*n}:{131+4*n}], v{18+td} offset:{off+1024}")
        a("s_waitcnt lgkmcnt(0)")
        for n in range(16):
            c = "0" if n == 0 else f"v[{96+16*td}:{111+16*td}]"
            a(f"v_mfma_f32_32x32x16_bf16 v[{96+16*td}:{111+16*td}], v[{128+4*n}:{131+4*n}], v[{32+4*n}:{35+4*n}], {c}")
    a("s_nop 15\ns_nop 3")
    for r in range(32):
        a(f"v_mul_f32 v{96+r}, v{96+r}, v22")
    for r in range(0, 32, 2):
        a(f"v_cvt_pk_bf16_f32 v{200+r//2}, v{96+r}, v{97+r}")
    a(f"s_add_u32 s40, s43, {j*4096}")
    for f in range(4):
        a(f"buffer_store_dwordx4 v[{200+4*f}:{203+4*f}], v2, s[32:35], s40 offen offset:{f*1024}")
    a("s_nop 2")
a("s_endpgm")

kernel_begin(a, "oproj_kernel")
prologue(256)
srd(a, 24, 12, W_B); srd(a, 32, 18, WS_B)
a("s_lshl_b32 s36, s21, 3\ns_add_u32 s36, s36, s20")
for i in range(7):
    a(f"v_add_u32 v10, {64*i}, v0\nv_mul_u32_u24 v11, 1171, v10\nv_lshrrev_b32 v11, 16, v11\nv_bfe_u32 v11, v11, 1, 1\nv_lshlrev_b32 v11, 2, v11\nv_xor_b32 v10, v10, v11\nv_lshlrev_b32 v{2+i}, 4, v10")
a("s_lshl_b32 s37, s20, 1\ns_lshr_b32 s38, s22, 1\ns_add_u32 s37, s37, s38\ns_mul_i32 s37, s37, 229376")
a("s_mul_i32 s38, s23, 14336\ns_add_u32 s37, s37, s38")
def wo_load(j):
    for u in range(2):
        for i in range(7):
            a(f"s_add_u32 m0, s38, {(j%2)*57344 + u*7168 + i*1024}\ns_add_u32 s41, s37, {j*57344 + u*7168}")
            a(f"buffer_load_dwordx4 v{2+i}, s[24:27], s41 offen {NT} lds")
wo_load(0); wo_load(1)
a("v_lshlrev_b32 v10, 3, v0\nv_lshlrev_b32 v11, 4, v0")
a(f"s_lshl_b32 s40, s36, 4\ns_add_u32 s43, s40, s22\ns_lshl_b32 s40, s43, 9\ns_add_u32 s40, s40, {WS_ST}")
for s in range(4):
    a(f"s_add_u32 s41, s40, {s*2048}\nbuffer_load_dwordx2 v[{12+2*s}:{13+2*s}], v10, s[32:35], s41 offen")
a("s_waitcnt vmcnt(0)")
a("v_max_f32 v20, v12, v14\nv_max3_f32 v20, v20, v16, v18")
for s in range(4):
    a(f"v_sub_f32 v{12+2*s}, v{12+2*s}, v20\nv_exp_f32 v{12+2*s}, v{12+2*s}\ns_nop 0\nv_mul_f32 v{12+2*s}, v{12+2*s}, v{13+2*s}")
a("v_add_f32 v20, v12, v14\nv_add_f32 v20, v20, v16\nv_add_f32 v20, v20, v18\nv_rcp_f32 v20, v20\ns_nop 0")
for s in range(4):
    a(f"v_mul_f32 v{12+2*s}, v{12+2*s}, v20")
a(f"s_lshl_b32 s43, s43, 14\ns_add_u32 s43, s43, {WS_OP}")
for j in range(4):
    for s in range(4):
        a(f"s_add_u32 s41, s43, {s*65536 + j*4096}")
        for f in range(4):
            a(f"buffer_load_dwordx4 v[{128+16*s+4*f}:{131+16*s+4*f}], v11, s[32:35], s41 offen offset:{f*1024}")
    a("s_waitcnt vmcnt(0)")
    for r in range(16):
        for s in range(4):
            src = 128 + 16*s + r
            a(f"v_lshlrev_b32 v24, 16, v{src}\nv_and_b32 v25, 0xffff0000, v{src}")
            if s == 0:
                a("v_mul_f32 v22, v24, v12\nv_mul_f32 v23, v25, v12")
            else:
                a(f"v_fmac_f32 v22, v24, v{12+2*s}\nv_fmac_f32 v23, v25, v{12+2*s}")
        a(f"v_cvt_pk_bf16_f32 v{64+16*j+r}, v22, v23")
a("v_lshrrev_b32 v5, 5, v0\nv_bfe_u32 v20, v0, 2, 2\nv_lshl_add_u32 v20, v5, 2, v20\nv_mul_u32_u24 v20, 896, v20")
a("v_bfe_u32 v21, v0, 4, 1\nv_lshl_add_u32 v20, v21, 5, v20\nv_and_b32 v21, 3, v0\nv_lshl_add_u32 v20, v21, 3, v20")
a("s_lshl_b32 s44, s23, 8\nv_add_u32 v20, s44, v20")
a("v_bfe_u32 v21, v0, 3, 1\nv_lshl_add_u32 v26, v21, 6, v20\nv_xor_b32 v21, 1, v21\nv_lshl_add_u32 v27, v21, 6, v20")
a("v_add_u32 v28, 57344, v26\nv_add_u32 v29, 57344, v27")
for r in range(64):
    a(f"v_mov_b32 v{128+r}, 0")
def wo_comp(j):
    for t in range(4):
        if t == 2:
            a("s_cmp_eq_u32 s23, 3\ns_cbranch_scc1 2f")
        for k in range(4):
            off = k*16*896 + (t//2)*128
            ad = 26 + (t % 2) + 2*(j % 2)
            a(f"ds_read_b64_tr_b16 v[{32+4*k}:{33+4*k}], v{ad} offset:{off}\nds_read_b64_tr_b16 v[{34+4*k}:{35+4*k}], v{ad} offset:{off+8*896}")
        a("s_waitcnt lgkmcnt(0)")
        for k in range(4):
            a(f"v_mfma_f32_32x32x16_bf16 v[{128+16*t}:{143+16*t}], v[{32+4*k}:{35+4*k}], v[{64+16*j+4*k}:{67+16*j+4*k}], v[{128+16*t}:{143+16*t}]")
    a.raw("2:")
a("s_barrier")
wo_comp(0); wo_comp(1)
a("s_barrier")
for i in range(7):
    a(f"v_add_u32 v10, {64*i}, v0\nv_mul_u32_u24 v9, 1171, v10\nv_lshrrev_b32 v9, 16, v9\nv_bfe_u32 v9, v9, 1, 1\nv_lshlrev_b32 v9, 2, v9\nv_xor_b32 v10, v10, v9\nv_lshlrev_b32 v{2+i}, 4, v10")
wo_load(2); wo_load(3)
a("s_waitcnt vmcnt(0)\ns_barrier")
wo_comp(2); wo_comp(3)
a("s_nop 15\ns_nop 3")
a(f"s_lshl_b32 s40, s36, 2\ns_add_u32 s40, s40, s22\ns_mul_i32 s40, s40, 57344\ns_lshl_b32 s41, s23, 14\ns_add_u32 s40, s40, s41\ns_add_u32 s40, s40, {WS_PO}")
for t in range(4):
    if t == 2:
        a("s_cmp_eq_u32 s23, 3\ns_cbranch_scc1 2f")
    a(f"s_add_u32 s41, s40, {t*4096}")
    for f in range(4):
        a(f"buffer_store_dwordx4 v[{128+16*t+4*f}:{131+16*t+4*f}], v11, s[32:35], s41 offen offset:{f*1024}")
a.raw("2:")
a("s_endpgm")

kernel_begin(a, "reduce_kernel")
prologue(224)
srd(a, 24, 14, OUT_B); srd(a, 32, 18, WS_B)
a("s_mul_i32 s36, s2, 4682\ns_lshr_b32 s36, s36, 16\ns_mul_i32 s37, s36, 14\ns_sub_u32 s37, s2, s37")
a("s_lshr_b32 s38, s36, 1\ns_and_b32 s39, s36, 1")
a(f"s_lshl_b32 s40, s38, 5\ns_add_u32 s40, s40, s39\ns_mul_i32 s40, s40, 57344\ns_lshl_b32 s41, s37, 12\ns_add_u32 s40, s40, s41\ns_lshl_b32 s41, s23, 10\ns_add_u32 s40, s40, s41\ns_add_u32 s40, s40, {WS_PO}")
a("v_lshlrev_b32 v2, 4, v0")
for h in range(16):
    a(f"s_add_u32 s41, s40, {h*2*57344}\nbuffer_load_dwordx4 v[{8+4*h}:{11+4*h}], v2, s[32:35], s41 offen")
a("v_and_b32 v3, 31, v0\nv_mul_u32_u24 v3, 896, v3\nv_lshrrev_b32 v4, 5, v0\nv_lshl_add_u32 v3, v4, 3, v3")
a("s_mul_i32 s40, s36, 28672\ns_lshl_b32 s41, s37, 6\ns_add_u32 s40, s40, s41\ns_lshl_b32 s41, s23, 4\ns_add_u32 s40, s40, s41")
a("s_waitcnt vmcnt(0)")
for h in range(1, 16):
    for r in range(4):
        a(f"v_add_f32 v{8+r}, v{8+r}, v{8+4*h+r}")
a("v_cvt_pk_bf16_f32 v4, v8, v9\nv_cvt_pk_bf16_f32 v5, v10, v11")
a("buffer_store_dwordx2 v[4:5], v3, s[24:27], s40 offen")
a("s_endpgm")

kernel_begin(a, "empty_kernel")
a("s_endpgm")

kernel_begin(a, "stream_kernel")
prologue(256)
srd(a, 24, 6, KV_B); srd(a, 28, 8, KV_B)
a("s_lshl_b32 s36, s20, 5\ns_lshr_b32 s37, s2, 3\ns_add_u32 s36, s36, s37\ns_lshl_b32 s37, s36, 17\ns_lshl_b32 s38, s23, 10\ns_add_u32 s37, s37, s38\nv_lshlrev_b32 v2, 4, v0")
SP = "" if "P" in PROBE else "nt"
for h in range(2):
    for i in range(32):
        a(f"s_add_u32 m0, s38, {i*4096}\ns_add_u32 s41, s37, {i*4096}\nbuffer_load_dwordx4 v2, s[{24+4*h}:{27+4*h}], s41 offen {SP} lds\ns_waitcnt vmcnt(8)")
a("s_waitcnt vmcnt(0)\ns_endpgm")

launches = [("qproj_kernel", 256, 147456), ("attn_kernel", 256, 131072), ("oproj_kernel", 256, 114688), ("reduce_kernel", 224, 0)]
descs = [("qproj_kernel", 128, 128), ("attn_kernel", 320, 256), ("oproj_kernel", 256, 256), ("reduce_kernel", 128, 128)]

descs += [("empty_kernel", 8, 8), ("stream_kernel", 8, 8)]
launches = [("empty_kernel", 256, 0)] * PROBE.count("E") + [("stream_kernel", 256, 131072)] * PROBE.count("S") + launches + [("empty_kernel", 256, 0)] * PROBE.count("e")
descs = [d for d in descs if d[0] in [l[0] for l in launches]]
out = HEADER
for k, g, l in launches:
    out += f"; @launch kernel={k} grid=({g},1,1) block=(256,1,1) lds={l}\n"
out += '.amdgcn_target "amdgcn-amd-amdhsa--gfx950"\n.text\n' + a.text() + '.section .rodata,"a"\n'
for k, v, ac in descs:
    out += kernel_desc(k, v, ac)
open(sys.argv[1], "w").write(out)
```

```python
import sys
from asmlib import *

NT = sys.argv[2] if len(sys.argv) > 2 else "nt"
NT = "" if NT == "plain" else NT
PROBE = sys.argv[3] if len(sys.argv) > 3 else ""

X_B, KV_B, W_B, OUT_B, WS_B = 458752, 33554432, 3670016, 458752, 268435456
WS_Q, WS_OP, WS_ST, WS_PO = 0, 4 << 20, 20 << 20, 24 << 20
LOG2E_16 = 0x3DB8AA3B

a = Asm()
STAMP = "T" in PROBE
WS_TS = 64 << 20
_st = [0]
def stamp():
    if STAMP:
        a(f"s_memrealtime s[{60+2*_st[0]}:{61+2*_st[0]}]")
        _st[0] += 1
def stamp_flush(first):
    if STAMP:
        a("s_waitcnt vmcnt(0)")
        stamp()
        a("s_waitcnt lgkmcnt(0)\ns_cmp_lg_u32 s23, 0\ns_cbranch_scc1 9f")
        a(f"s_lshl_b32 s40, s2, 8\ns_add_u32 s40, s40, {WS_TS + first*8}\nv_mov_b32 v2, 0")
        for i in range(_st[0]):
            a(f"v_mov_b32 v4, s{60+2*i}\nv_mov_b32 v5, s{61+2*i}\nbuffer_store_dwordx2 v[4:5], v2, s[32:35], s40 offen offset:{8*i}\ns_nop 1")
        a.raw("9:")
        _st[0] = 0

def prologue(nwg):
    a(f"s_cmp_ge_u32 s2, {nwg}")
    a("s_cbranch_scc0 1f\ns_endpgm")
    a.raw("1:")
    stamp()
    a("s_load_dwordx8 s[4:11], s[0:1], 0\ns_load_dwordx8 s[12:19], s[0:1], 32")
    a("s_and_b32 s20, s2, 7\ns_lshr_b32 s21, s2, 3\ns_and_b32 s22, s21, 3\ns_lshr_b32 s21, s21, 2")
    a("v_lshrrev_b32 v1, 6, v0\ns_nop 0\nv_readfirstlane_b32 s23, v1\nv_and_b32 v0, 63, v0")
    a("s_waitcnt lgkmcnt(0)")

kernel_begin(a, "qproj_kernel")
prologue(256)
srd(a, 24, 4, X_B); srd(a, 28, 10, W_B); srd(a, 32, 18, WS_B)
a("v_lshrrev_b32 v5, 3, v0\nv_and_b32 v6, 7, v0\nv_lshrrev_b32 v7, 4, v0")
a("s_lshl_b32 s36, s23, 4\ns_mul_i32 s37, s21, 64\ns_add_u32 s36, s36, s37")
for i in range(2):
    a(f"v_add_u32 v8, {8*i}, v5\nv_add_u32 v8, s36, v8\nv_mul_u32_u24 v8, 896, v8")
    a(f"v_add_u32 v9, {4*i}, v7\nv_xor_b32 v9, v6, v9\nv_lshl_add_u32 v{2+i}, v9, 4, v8")
a("v_and_b32 v8, 15, v0\nv_lshlrev_b32 v9, 2, v7\nv_xor_b32 v8, v8, v9\nv_lshlrev_b32 v8, 4, v8\nv_lshl_add_u32 v4, v7, 13, v8")
a("s_lshl_b32 s38, s20, 10\ns_lshl_b32 s39, s22, 8\ns_add_u32 s38, s38, s39")
a("s_lshl_b32 s39, s23, 17\ns_add_u32 s38, s38, s39")
CH = 24576
def q_load(c, slot):
    for i in range(2):
        a(f"s_lshl_b32 s40, s23, 11\ns_add_u32 m0, s40, {slot*CH + i*1024}\ns_mov_b32 s41, {c*128}")
        a(f"buffer_load_dwordx4 v{2+i}, s[24:27], s41 offen {NT} lds")
    for i in range(4):
        a(f"s_lshl_b32 s40, s23, 12\ns_add_u32 m0, s40, {slot*CH + 8192 + i*1024}\ns_add_u32 s41, s38, {(c*64 + i*4)*8192}")
        a(f"buffer_load_dwordx4 v4, s[28:31], s41 offen {NT} lds")
for c in range(6):
    q_load(c, c)
a("v_and_b32 v5, 15, v0\nv_lshrrev_b32 v6, 2, v5\nv_lshrrev_b32 v7, 5, v0")
a("v_lshl_add_u32 v8, v7, 3, v6\nv_lshlrev_b32 v8, 8, v8")
a("v_xor_b32 v9, s23, v6\nv_lshl_add_u32 v8, v9, 6, v8")
a("v_bfe_u32 v9, v0, 4, 1\nv_lshl_add_u32 v8, v9, 5, v8")
a("v_and_b32 v9, 1, v0\nv_lshl_add_u32 v8, v9, 4, v8\nv_bfe_u32 v9, v0, 1, 1\nv_lshl_add_u32 v8, v9, 3, v8")
a("v_add_u32 v10, 8192, v8")
a("v_and_b32 v5, 31, v0\nv_bfe_u32 v6, v0, 1, 3")
for kk in range(4):
    a(f"v_add_u32 v8, {2*kk}, v7\nv_xor_b32 v8, v8, v6\nv_lshlrev_b32 v8, 4, v8\nv_lshl_add_u32 v{11+kk}, v5, 7, v8")
for r in range(32):
    a(f"v_mov_b32 v{32+r}, 0")
def q_comp(slot):
    base = slot*CH
    a(f"v_add_u32 v15, {base}, v10")
    for kk in range(4):
        a(f"v_add_u32 v16, {base}, v{11+kk}")
        a(f"ds_read_b64_tr_b16 v[64:65], v15 offset:{(16*kk)*256}\nds_read_b64_tr_b16 v[66:67], v15 offset:{(16*kk+4)*256}")
        a("ds_read_b128 v[68:71], v16\nds_read_b128 v[72:75], v16 offset:4096")
        a("s_waitcnt lgkmcnt(0)")
        a("v_mfma_f32_32x32x16_bf16 v[32:47], v[64:67], v[68:71], v[32:47]")
        a("v_mfma_f32_32x32x16_bf16 v[48:63], v[64:67], v[72:75], v[48:63]")
stamp()
a("s_waitcnt vmcnt(0)\ns_barrier")
stamp()
q_comp(0)
a("s_barrier")
q_load(6, 0)
for c in range(1, 6):
    q_comp(c)
a("s_waitcnt vmcnt(0)\ns_barrier")
q_comp(0)
a("s_nop 15\ns_nop 3")
for r in range(0, 32, 2):
    a(f"v_cvt_pk_bf16_f32 v{64+r//2}, v{32+r}, v{33+r}")
a("s_lshl_b32 s40, s21, 3\ns_add_u32 s40, s40, s20\ns_lshl_b32 s40, s40, 16")
a("s_lshr_b32 s41, s22, 1\ns_lshl_b32 s41, s41, 15\ns_add_u32 s40, s40, s41")
a("s_and_b32 s41, s22, 1\ns_lshl_b32 s41, s41, 13\ns_add_u32 s40, s40, s41")
a("s_lshl_b32 s41, s23, 11\ns_add_u32 s40, s40, s41\ns_add_u32 s41, s40, 16384")
a("v_lshlrev_b32 v2, 4, v0")
a("buffer_store_dwordx4 v[64:67], v2, s[32:35], s40 offen\nbuffer_store_dwordx4 v[68:71], v2, s[32:35], s40 offen offset:1024")
a("buffer_store_dwordx4 v[72:75], v2, s[32:35], s41 offen\nbuffer_store_dwordx4 v[76:79], v2, s[32:35], s41 offen offset:1024")
stamp()
stamp_flush(0)
a("s_endpgm")

kernel_begin(a, "attn_kernel")
prologue(256)
srd(a, 24, 6, KV_B); srd(a, 28, 8, KV_B); srd(a, 32, 18, WS_B)
a("s_lshl_b32 s36, s21, 3\ns_add_u32 s36, s36, s20")
a("s_lshl_b32 s37, s36, 19\ns_lshl_b32 s38, s22, 17\ns_add_u32 s37, s37, s38")
a("s_lshl_b32 s38, s36, 16\ns_lshl_b32 s39, s23, 14\ns_add_u32 s38, s38, s39\nv_lshlrev_b32 v2, 4, v0")
for ks in range(16):
    a(f"s_add_u32 s39, s38, {(ks//4)*4096}\nbuffer_load_dwordx4 a[{4*ks}:{4*ks+3}], v2, s[32:35], s39 offen offset:{(ks%4)*1024}")
a("v_lshrrev_b32 v5, 5, v0\nv_and_b32 v6, 31, v0\ns_lshl_b32 s38, s23, 2")
for i in range(2):
    a(f"v_add_u32 v7, {2*i}, v5\nv_add_u32 v7, s38, v7\nv_xor_b32 v8, v6, v7\nv_lshlrev_b32 v8, 4, v8\nv_lshl_add_u32 v{3+i}, v7, 9, v8")
for g16 in range(16):
    for i in range(2):
        a(f"s_lshl_b32 s40, s23, 11\ns_add_u32 m0, s40, {g16*8192 + i*1024}\ns_add_u32 s41, s37, {g16*8192}")
        a(f"buffer_load_dwordx4 v{3+i}, s[24:27], s41 offen {NT} lds")
a("v_and_b32 v7, 15, v0")
for k8 in range(8):
    a(f"v_add_u32 v8, {2*k8}, v5\nv_xor_b32 v8, v8, v7\nv_lshlrev_b32 v8, 4, v8\nv_lshl_add_u32 v{10+k8}, v6, 9, v8")
a("v_lshrrev_b32 v7, 3, v0\nv_and_b32 v8, 7, v0\nv_bfe_u32 v20, v0, 4, 1\nv_lshlrev_b32 v21, 2, v20\nv_xor_b32 v8, v8, v21\nv_lshlrev_b32 v8, 4, v8\nv_lshl_add_u32 v9, v7, 9, v8")
a("v_bfe_u32 v7, v0, 2, 2\nv_lshl_add_u32 v7, v5, 2, v7\nv_lshlrev_b32 v7, 7, v7\nv_lshl_add_u32 v7, v20, 5, v7\nv_and_b32 v8, 3, v0\nv_lshl_add_u32 v7, v8, 3, v7")
a("v_bfe_u32 v8, v0, 3, 1\nv_lshl_add_u32 v18, v8, 6, v7\nv_xor_b32 v8, 1, v8\nv_lshl_add_u32 v19, v8, 6, v7")
stamp()
a("s_waitcnt vmcnt(0)\ns_barrier")
stamp()
a("s_waitcnt lgkmcnt(0)")
S0 = 128
for kt in range(8):
    if kt == 4:
        for k8 in range(8):
            a(f"v_add_u32 v{10+k8}, 0x10000, v{10+k8}")
    for ks in range(16):
        a(f"ds_read_b128 v[{32+4*ks}:{35+4*ks}], v{10+ks%8} offset:{(kt%4)*16384 + (ks//8)*256}")
    for ks in range(16):
        a(f"s_waitcnt lgkmcnt({15-ks})")
        c = "0" if ks == 0 else f"v[{S0+16*kt}:{S0+16*kt+15}]"
        a(f"v_mfma_f32_32x32x16_bf16 v[{S0+16*kt}:{S0+16*kt+15}], v[{32+4*ks}:{35+4*ks}], a[{4*ks}:{4*ks+3}], {c}")
a("s_barrier")
stamp()
for j in range(4):
    for i in range(8):
        a(f"s_lshl_b32 s40, s23, 13\ns_add_u32 m0, s40, {j*32768 + i*1024}\ns_lshl_b32 s41, s23, 15\ns_add_u32 s41, s41, s37\ns_add_u32 s41, s41, {i*4096 + j*128}")
        a(f"buffer_load_dwordx4 v9, s[28:31], s41 offen {NT} lds")
a("s_nop 15")
a(f"v_max_f32 v20, v{S0}, v{S0+1}")
for r in range(2, 128, 2):
    a(f"v_max3_f32 v20, v20, v{S0+r}, v{S0+r+1}")
a("v_mov_b32 v21, v20\ns_nop 1\nv_permlane32_swap_b32 v20, v21\ns_nop 1\nv_max_f32 v20, v20, v21")
a(f"s_mov_b32 s42, {LOG2E_16}\nv_mul_f32 v20, s42, v20\nv_mov_b32 v22, 0")
for r in range(128):
    a(f"v_fma_f32 v{S0+r}, v{S0+r}, s42, -v20")
for r in range(128):
    a(f"v_exp_f32 v{S0+r}, v{S0+r}")
a("s_nop 0")
for r in range(128):
    a(f"v_add_f32 v22, v22, v{S0+r}")
for r in range(0, 128, 2):
    a(f"v_cvt_pk_bf16_f32 v{32+r//2}, v{S0+r}, v{S0+r+1}")
a("v_mov_b32 v23, v22\ns_nop 1\nv_permlane32_swap_b32 v22, v23\ns_nop 1\nv_add_f32 v21, v22, v23\nv_rcp_f32 v22, v21")
a(f"s_lshl_b32 s40, s36, 4\ns_lshl_b32 s41, s22, 2\ns_add_u32 s40, s40, s41\ns_add_u32 s43, s40, s23\ns_lshl_b32 s40, s43, 9\ns_add_u32 s40, s40, {WS_ST}")
a("v_lshlrev_b32 v24, 3, v0\nbuffer_store_dwordx2 v[20:21], v24, s[32:35], s40 offen")
a(f"s_lshl_b32 s43, s43, 14\ns_add_u32 s43, s43, {WS_OP}")
stamp()
a("s_waitcnt vmcnt(0)\ns_barrier")
stamp()
for j in range(4):
    if j == 2:
        a("v_add_u32 v18, 0x10000, v18\nv_add_u32 v19, 0x10000, v19")
    for td in range(2):
        for n in range(16):
            off = (j % 2)*32768 + n*16*128
            a(f"ds_read_b64_tr_b16 v[{128+4*n}:{129+4*n}], v{18+td} offset:{off}\nds_read_b64_tr_b16 v[{130+4*n}:{131+4*n}], v{18+td} offset:{off+1024}")
        a("s_waitcnt lgkmcnt(0)")
        for n in range(16):
            c = "0" if n == 0 else f"v[{96+16*td}:{111+16*td}]"
            a(f"v_mfma_f32_32x32x16_bf16 v[{96+16*td}:{111+16*td}], v[{128+4*n}:{131+4*n}], v[{32+4*n}:{35+4*n}], {c}")
    a("s_nop 15\ns_nop 3")
    for r in range(32):
        a(f"v_mul_f32 v{96+r}, v{96+r}, v22")
    for r in range(0, 32, 2):
        a(f"v_cvt_pk_bf16_f32 v{200+r//2}, v{96+r}, v{97+r}")
    a(f"s_add_u32 s40, s43, {j*4096}")
    for f in range(4):
        a(f"buffer_store_dwordx4 v[{200+4*f}:{203+4*f}], v2, s[32:35], s40 offen offset:{f*1024}")
    a("s_nop 2")
stamp()
stamp_flush(5)
a("s_endpgm")

kernel_begin(a, "oproj_kernel")
prologue(256)
srd(a, 24, 12, W_B); srd(a, 32, 18, WS_B)
a("s_lshl_b32 s36, s21, 3\ns_add_u32 s36, s36, s20")
for i in range(7):
    a(f"v_add_u32 v10, {64*i}, v0\nv_mul_u32_u24 v11, 1171, v10\nv_lshrrev_b32 v11, 16, v11\nv_bfe_u32 v11, v11, 1, 1\nv_lshlrev_b32 v11, 2, v11\nv_xor_b32 v10, v10, v11\nv_lshlrev_b32 v{2+i}, 4, v10")
a("s_lshl_b32 s37, s20, 1\ns_lshr_b32 s38, s22, 1\ns_add_u32 s37, s37, s38\ns_mul_i32 s37, s37, 229376")
a("s_mul_i32 s38, s23, 14336\ns_add_u32 s37, s37, s38")
def wo_load(j):
    for u in range(2):
        for i in range(7):
            a(f"s_add_u32 m0, s38, {(j%2)*57344 + u*7168 + i*1024}\ns_add_u32 s41, s37, {j*57344 + u*7168}")
            a(f"buffer_load_dwordx4 v{2+i}, s[24:27], s41 offen {NT} lds")
wo_load(0); wo_load(1)
a("v_lshlrev_b32 v10, 3, v0\nv_lshlrev_b32 v11, 4, v0")
a(f"s_lshl_b32 s40, s36, 4\ns_add_u32 s43, s40, s22\ns_lshl_b32 s40, s43, 9\ns_add_u32 s40, s40, {WS_ST}")
for s in range(4):
    a(f"s_add_u32 s41, s40, {s*2048}\nbuffer_load_dwordx2 v[{12+2*s}:{13+2*s}], v10, s[32:35], s41 offen")
a("s_waitcnt vmcnt(0)")
a("v_max_f32 v20, v12, v14\nv_max3_f32 v20, v20, v16, v18")
for s in range(4):
    a(f"v_sub_f32 v{12+2*s}, v{12+2*s}, v20\nv_exp_f32 v{12+2*s}, v{12+2*s}\ns_nop 0\nv_mul_f32 v{12+2*s}, v{12+2*s}, v{13+2*s}")
a("v_add_f32 v20, v12, v14\nv_add_f32 v20, v20, v16\nv_add_f32 v20, v20, v18\nv_rcp_f32 v20, v20\ns_nop 0")
for s in range(4):
    a(f"v_mul_f32 v{12+2*s}, v{12+2*s}, v20")
a(f"s_lshl_b32 s43, s43, 14\ns_add_u32 s43, s43, {WS_OP}")
for j in range(4):
    for s in range(4):
        a(f"s_add_u32 s41, s43, {s*65536 + j*4096}")
        for f in range(4):
            a(f"buffer_load_dwordx4 v[{128+16*s+4*f}:{131+16*s+4*f}], v11, s[32:35], s41 offen offset:{f*1024}")
    a("s_waitcnt vmcnt(0)")
    for r in range(16):
        for s in range(4):
            src = 128 + 16*s + r
            a(f"v_lshlrev_b32 v24, 16, v{src}\nv_and_b32 v25, 0xffff0000, v{src}")
            if s == 0:
                a("v_mul_f32 v22, v24, v12\nv_mul_f32 v23, v25, v12")
            else:
                a(f"v_fmac_f32 v22, v24, v{12+2*s}\nv_fmac_f32 v23, v25, v{12+2*s}")
        a(f"v_cvt_pk_bf16_f32 v{64+16*j+r}, v22, v23")
a("v_lshrrev_b32 v5, 5, v0\nv_bfe_u32 v20, v0, 2, 2\nv_lshl_add_u32 v20, v5, 2, v20\nv_mul_u32_u24 v20, 896, v20")
a("v_bfe_u32 v21, v0, 4, 1\nv_lshl_add_u32 v20, v21, 5, v20\nv_and_b32 v21, 3, v0\nv_lshl_add_u32 v20, v21, 3, v20")
a("s_lshl_b32 s44, s23, 8\nv_add_u32 v20, s44, v20")
a("v_bfe_u32 v21, v0, 3, 1\nv_lshl_add_u32 v26, v21, 6, v20\nv_xor_b32 v21, 1, v21\nv_lshl_add_u32 v27, v21, 6, v20")
a("v_add_u32 v28, 57344, v26\nv_add_u32 v29, 57344, v27")
for r in range(64):
    a(f"v_mov_b32 v{128+r}, 0")
def wo_comp(j):
    for t in range(4):
        if t == 2:
            a("s_cmp_eq_u32 s23, 3\ns_cbranch_scc1 2f")
        for k in range(4):
            off = k*16*896 + (t//2)*128
            ad = 26 + (t % 2) + 2*(j % 2)
            a(f"ds_read_b64_tr_b16 v[{32+4*k}:{33+4*k}], v{ad} offset:{off}\nds_read_b64_tr_b16 v[{34+4*k}:{35+4*k}], v{ad} offset:{off+8*896}")
        a("s_waitcnt lgkmcnt(0)")
        for k in range(4):
            a(f"v_mfma_f32_32x32x16_bf16 v[{128+16*t}:{143+16*t}], v[{32+4*k}:{35+4*k}], v[{64+16*j+4*k}:{67+16*j+4*k}], v[{128+16*t}:{143+16*t}]")
    a.raw("2:")
stamp()
a("s_barrier")
wo_comp(0); wo_comp(1)
stamp()
a("s_barrier")
for i in range(7):
    a(f"v_add_u32 v10, {64*i}, v0\nv_mul_u32_u24 v9, 1171, v10\nv_lshrrev_b32 v9, 16, v9\nv_bfe_u32 v9, v9, 1, 1\nv_lshlrev_b32 v9, 2, v9\nv_xor_b32 v10, v10, v9\nv_lshlrev_b32 v{2+i}, 4, v10")
wo_load(2); wo_load(3)
a("s_waitcnt vmcnt(0)\ns_barrier")
stamp()
wo_comp(2); wo_comp(3)
stamp()
a("s_nop 15\ns_nop 3")
a(f"s_lshl_b32 s40, s36, 2\ns_add_u32 s40, s40, s22\ns_mul_i32 s40, s40, 57344\ns_lshl_b32 s41, s23, 14\ns_add_u32 s40, s40, s41\ns_add_u32 s40, s40, {WS_PO}")
for t in range(4):
    if t == 2:
        a("s_cmp_eq_u32 s23, 3\ns_cbranch_scc1 2f")
    a(f"s_add_u32 s41, s40, {t*4096}")
    for f in range(4):
        a(f"buffer_store_dwordx4 v[{128+16*t+4*f}:{131+16*t+4*f}], v11, s[32:35], s41 offen offset:{f*1024}")
a.raw("2:")
stamp_flush(13)
a("s_endpgm")

kernel_begin(a, "reduce_kernel")
prologue(224)
srd(a, 24, 14, OUT_B); srd(a, 32, 18, WS_B)
a("s_mul_i32 s36, s2, 4682\ns_lshr_b32 s36, s36, 16\ns_mul_i32 s37, s36, 14\ns_sub_u32 s37, s2, s37")
a("s_lshr_b32 s38, s36, 1\ns_and_b32 s39, s36, 1")
a(f"s_lshl_b32 s40, s38, 5\ns_add_u32 s40, s40, s39\ns_mul_i32 s40, s40, 57344\ns_lshl_b32 s41, s37, 12\ns_add_u32 s40, s40, s41\ns_lshl_b32 s41, s23, 10\ns_add_u32 s40, s40, s41\ns_add_u32 s40, s40, {WS_PO}")
a("v_lshlrev_b32 v2, 4, v0")
for h in range(16):
    a(f"s_add_u32 s41, s40, {h*2*57344}\nbuffer_load_dwordx4 v[{8+4*h}:{11+4*h}], v2, s[32:35], s41 offen")
a("v_and_b32 v3, 31, v0\nv_mul_u32_u24 v3, 896, v3\nv_lshrrev_b32 v4, 5, v0\nv_lshl_add_u32 v3, v4, 3, v3")
a("s_mul_i32 s40, s36, 28672\ns_lshl_b32 s41, s37, 6\ns_add_u32 s40, s40, s41\ns_lshl_b32 s41, s23, 4\ns_add_u32 s40, s40, s41")
a("s_waitcnt vmcnt(0)")
for h in range(1, 16):
    for r in range(4):
        a(f"v_add_f32 v{8+r}, v{8+r}, v{8+4*h+r}")
a("v_cvt_pk_bf16_f32 v4, v8, v9\nv_cvt_pk_bf16_f32 v5, v10, v11")
a("buffer_store_dwordx2 v[4:5], v3, s[24:27], s40 offen")
stamp()
stamp_flush(19)
a("s_endpgm")

kernel_begin(a, "line_kernel")
a("s_cmp_ge_u32 s2, 256\ns_cbranch_scc1 8f\nv_mov_b32 v1, 0")
if "W" in PROBE:
    a("s_getpc_b64 s[4:5]\nv_lshlrev_b32 v2, 4, v0")
    for i in range(8):
        a(f"global_load_dwordx4 v[4:7], v2, s[4:5]\nv_add_u32 v2, 4096, v2")
if "L" in PROBE:
    for i in range(4096):
        a("v_fma_f32 v1, v1, v1, v1")
elif "M" in PROBE:
    for i in range(512):
        a("v_mfma_f32_32x32x16_bf16 v[16:31], v[8:11], v[12:15], v[16:31]")
        for k in range(5):
            a("v_fma_f32 v1, v1, v1, v1")
elif "m" in PROBE:
    a("s_mov_b32 s6, 64")
    a.raw("7:")
    for i in range(8):
        a("v_mfma_f32_32x32x16_bf16 v[16:31], v[8:11], v[12:15], v[16:31]")
        for k in range(5):
            a("v_fma_f32 v1, v1, v1, v1")
    a("s_sub_u32 s6, s6, 1\ns_cmp_lg_u32 s6, 0\ns_cbranch_scc1 7b")
else:
    a("s_mov_b32 s6, 64")
    a.raw("7:")
    for i in range(64):
        a("v_fma_f32 v1, v1, v1, v1")
    a("s_sub_u32 s6, s6, 1\ns_cmp_lg_u32 s6, 0\ns_cbranch_scc1 7b")
a.raw("8:")
a("s_endpgm")

kernel_begin(a, "empty_kernel")
a("s_endpgm")

kernel_begin(a, "stream_kernel")
prologue(256)
srd(a, 24, 6, KV_B); srd(a, 28, 8, KV_B)
a("s_lshl_b32 s36, s20, 5\ns_lshr_b32 s37, s2, 3\ns_add_u32 s36, s36, s37\ns_lshl_b32 s37, s36, 17\ns_lshl_b32 s38, s23, 10\ns_add_u32 s37, s37, s38\nv_lshlrev_b32 v2, 4, v0")
SP = "" if "P" in PROBE else "nt"
for h in range(2):
    for i in range(32):
        a(f"s_add_u32 m0, s38, {i*4096}\ns_add_u32 s41, s37, {i*4096}\nbuffer_load_dwordx4 v2, s[{24+4*h}:{27+4*h}], s41 offen {SP} lds\ns_waitcnt vmcnt(8)")
a("s_waitcnt vmcnt(0)\ns_endpgm")

launches = [("qproj_kernel", 256, 147456), ("attn_kernel", 256, 131072), ("oproj_kernel", 256, 114688), ("reduce_kernel", 224, 0)]
descs = [("qproj_kernel", 128, 128), ("attn_kernel", 320, 256), ("oproj_kernel", 256, 256), ("reduce_kernel", 128, 128)]

descs += [("empty_kernel", 8, 8), ("stream_kernel", 8, 8), ("line_kernel", 32, 32)]
launches = [("line_kernel", 256, 131072)] * (PROBE.count("L") + PROBE.count("l") + PROBE.count("M") + PROBE.count("m")) + [("empty_kernel", 256, 0)] * PROBE.count("E") + [("stream_kernel", 256, 131072)] * PROBE.count("S") + launches + [("empty_kernel", 256, 0)] * PROBE.count("e")
descs = [d for d in descs if d[0] in [l[0] for l in launches]]
out = HEADER
for k, g, l in launches:
    out += f"; @launch kernel={k} grid=({g},1,1) block=(256,1,1) lds={l}\n"
out += '.amdgcn_target "amdgcn-amd-amdhsa--gfx950"\n.text\n' + a.text() + '.section .rodata,"a"\n'
for k, v, ac in descs:
    out += kernel_desc(k, v, ac)
open(sys.argv[1], "w").write(out)
```
